```python
import torch

def _softmax(x, axis=-1):
    return torch.softmax(x, dim=axis)

def _gelu(x):
    return torch.nn.functional.gelu(x, approximate='tanh')

def _silu(x):
    return torch.nn.functional.silu(x)

def _sigmoid(x):
    return torch.sigmoid(x)

def _layernorm(x, axis=-1, eps=1e-05):
    m = x.mean(dim=axis, keepdim=True)
    v = x.var(dim=axis, keepdim=True, unbiased=False)
    return (x - m) / torch.sqrt(v + eps)

def _scatter_add(tgt, idx, src, axis=0):
    return tgt.clone().index_add_(axis, idx, src)

def _segment_sum(src, seg, n):
    out = torch.zeros((n,) + src.shape[1:], dtype=src.dtype)
    return out.index_add_(0, seg, src)

def _pad(x, pw):
    flat = tuple((v for pair in reversed(pw) for v in pair))
    return torch.nn.functional.pad(x, flat)
kernel_name = 'sequential_preLN__grouped_kv_mqa__mixer_gmlp__prompt'

def setup_inputs():

    _w = lambda a: (lambda t: t.to(torch.bfloat16) if t.is_floating_point() else t)(torch.as_tensor(a))

    def _A_setup():
        B, S, D, H = (1, 2048, 512, 32)
        Dh = D // H
        return {'x': _w((lambda *s: torch.randn(*s, dtype=torch.bfloat16) * 0.05)(B, S, D)), 'wq': _w((lambda *s: torch.randn(*s, dtype=torch.bfloat16) * 0.05)(D, H * Dh)), 'wk': _w((lambda *s: torch.randn(*s, dtype=torch.bfloat16) * 0.05)(D, Dh)), 'wv': _w((lambda *s: torch.randn(*s, dtype=torch.bfloat16) * 0.05)(D, Dh)), 'wo': _w((lambda *s: torch.randn(*s, dtype=torch.bfloat16) * 0.05)(H * Dh, D))}
    _A_in = _A_setup()

    def _B_setup():
        B, S, D, F = (1, 2048, 512, 1792)
        Fh = F // 2
        return {'x': _w((lambda *s: torch.randn(*s, dtype=torch.bfloat16) * 0.05)(B, S, D)), 'w_in': _w((lambda *s: torch.randn(*s, dtype=torch.bfloat16) * 0.8)(D, 2 * Fh)), 'w_sp': _w(0.01 * (lambda *s: torch.randn(*s, dtype=torch.bfloat16) * 0.8)(S, S)), 'b_sp': _w(1.0 + 0.01 * (lambda *s: torch.randn(*s, dtype=torch.bfloat16) * 0.05)(S)), 'w_out': _w((lambda *s: torch.randn(*s, dtype=torch.bfloat16) * 0.05)(Fh, D))}
    _B_in = _B_setup()
    return {'A_x': _A_in['x'], 'A_wq': _A_in['wq'], 'A_wk': _A_in['wk'], 'A_wv': _A_in['wv'], 'A_wo': _A_in['wo'], 'B_x': _B_in['x'], 'B_w_in': _B_in['w_in'], 'B_w_sp': _B_in['w_sp'], 'B_b_sp': _B_in['b_sp'], 'B_w_out': _B_in['w_out']}

def reference(A_x, A_wq, A_wk, A_wv, A_wo, B_x, B_w_in, B_w_sp, B_b_sp, B_w_out):

    def _A_ref(x, wq, wk, wv, wo):
        B, S, D = x.shape
        H = 32
        Dh = D // H
        q = (lambda x, *d: x.permute(*d))((x @ wq).reshape(B, S, H, Dh), 0, 2, 1, 3)
        k = x @ wk
        v = x @ wv
        scores = torch.einsum('bhqd,bkd->bhqk', q, k) * Dh ** (-0.5)
        p = _softmax(scores, axis=-1)
        o = torch.einsum('bhqk,bkd->bhqd', p, v)
        return (lambda x, *d: x.permute(*d))(o, 0, 2, 1, 3).reshape(B, S, H * Dh) @ wo

    def _B_ref(x, w_in, w_sp, b_sp, w_out):
        B, S, D = x.shape
        F = w_in.shape[-1]
        Fh = F // 2
        z = _gelu(torch.einsum('bsd,df->bsf', x, w_in))
        z1 = z[..., :Fh].clone()
        z2 = _layernorm(z[..., Fh:], axis=-1)
        g = torch.einsum('ts,bsf->btf', w_sp, z2) + b_sp[None, :, None]
        return torch.einsum('bsf,fd->bsd', z1 * g, w_out)
    x = A_x
    h = x + _A_ref(_layernorm(x, axis=-1), A_wq, A_wk, A_wv, A_wo)
    h2 = h + _B_ref(_layernorm(h, axis=-1), B_w_in, B_w_sp, B_b_sp, B_w_out)
    return h2
```

```python
import re

TRANS = ("v_exp_f32", "v_log_f32", "v_rcp_f32", "v_rsq_f32", "v_sqrt_f32", "v_sin_f32", "v_cos_f32", "v_exp_f16", "v_rcp_f16")

def parse_regs(tok):
    tok = tok.strip()
    neg = tok.lstrip('-')
    m = re.fullmatch(r'abs\((.*)\)', neg)
    if m: neg = m.group(1)
    m = re.fullmatch(r'\|(.*)\|', neg)
    if m: neg = m.group(1)
    m = re.fullmatch(r'([vas])(\d+)', neg)
    if m: return {(m.group(1), int(m.group(2)))}
    m = re.fullmatch(r'([vas])\[(\d+):(\d+)\]', neg)
    if m: return {(m.group(1), i) for i in range(int(m.group(2)), int(m.group(3)) + 1)}
    if neg == 'vcc': return {('s', 106), ('s', 107)}
    if neg == 'vcc_lo': return {('s', 106)}
    if neg == 'vcc_hi': return {('s', 107)}
    if neg == 'exec': return {('s', 126), ('s', 127)}
    if neg == 'exec_lo': return {('s', 126)}
    if neg == 'exec_hi': return {('s', 127)}
    if neg == 'm0': return {('s', 124)}
    return set()

class Ins:
    __slots__ = ('text', 'op', 'ops', 'kind', 'dst', 'src', 'srcC', 'passes', 'trans', 'mods', 'isdpp', 'lds', 'comment')
    def __init__(self, text):
        self.text = text
        t = text.split(';')[0].strip()
        self.comment = None
        parts = t.split(None, 1)
        self.op = parts[0]
        rest = parts[1] if len(parts) > 1 else ''
        ops = []; cur = ''; depth = 0
        for ch in rest:
            if ch in '[(': depth += 1
            if ch in '])': depth -= 1
            if ch == ',' and depth == 0:
                ops.append(cur.strip()); cur = ''
            else: cur += ch
        if cur.strip(): ops.append(cur.strip())
        self.mods = ''
        if ops:
            last = ops[-1].split(None, 1)
            ops[-1] = last[0]
            if len(last) > 1: self.mods = last[1]
        self.ops = ops
        op = self.op
        self.dst = set(); self.src = set(); self.srcC = set(); self.passes = 0
        self.trans = False; self.isdpp = ('dpp' in op) or ('quad_perm' in self.mods) or ('row_' in self.mods)
        self.lds = False
        R = parse_regs
        if op.startswith('v_mfma'):
            self.kind = 'mfma'
            self.dst = R(ops[0]); self.src = R(ops[1]) | R(ops[2]); self.srcC = R(ops[3])
            self.passes = 8 if '32x32' in op else 4
        elif op.startswith('v_'):
            self.kind = 'valu'
            base = op.replace('_e32', '').replace('_e64', '').replace('_dpp', '').replace('_sdwa', '')
            self.trans = base in TRANS
            if base.startswith('v_cmp'):
                self.dst = R(ops[0]);
                for o in ops[1:]: self.src |= R(o)
            elif base in ('v_permlane16_swap_b32', 'v_permlane32_swap_b32'):
                self.dst = R(ops[0]) | R(ops[1]); self.src = set(self.dst)
            elif base in ('v_add_co_u32', 'v_sub_co_u32', 'v_addc_co_u32', 'v_subb_co_u32'):
                self.dst = R(ops[0]) | R(ops[1])
                for o in ops[2:]: self.src |= R(o)
            else:
                self.dst = R(ops[0])
                for o in ops[1:]: self.src |= R(o)
                if base in ('v_fmac_f32', 'v_dot2c_f32_bf16', 'v_writelane_b32') or 'UNUSED_PRESERVE' in self.mods or self.isdpp:
                    self.src |= R(ops[0])
                if base == 'v_cndmask_b32' and len(ops) == 3:
                    self.src |= R('vcc')
        elif op.startswith('ds_'):
            self.kind = 'ds'
            if op.startswith('ds_read') or op.startswith('ds_bpermute') or op.startswith('ds_swizzle') or op.startswith('ds_permute'):
                self.dst = R(ops[0])
                for o in ops[1:]: self.src |= R(o)
            elif '_rtn' in op:
                self.dst = R(ops[0])
                for o in ops[1:]: self.src |= R(o)
            else:
                for o in ops: self.src |= R(o)
        elif op.startswith('buffer_') or op.startswith('global_'):
            self.kind = 'vmem'
            mods = ' ' + self.mods + ' '
            if op in ('buffer_wbl2', 'buffer_inv'):
                pass
            elif ' lds ' in mods or op.startswith('global_load_lds'):
                self.lds = True
                for o in ops: self.src |= R(o)
                self.src |= R('m0')
            elif '_load' in op:
                self.dst = R(ops[0])
                for o in ops[1:]: self.src |= R(o)
                if 'd16' in op: self.src |= R(ops[0])
            elif '_store' in op:
                for o in ops: self.src |= R(o)
            elif '_atomic' in op:
                if ' sc0 ' in mods:
                    self.dst = R(ops[0])
                    for o in ops[1:]: self.src |= R(o)
                    if op.startswith('buffer_'): self.src |= R(ops[0])
                else:
                    for o in ops: self.src |= R(o)
            else:
                raise ValueError('unknown vmem ' + text)
        elif op.startswith('s_'):
            self.kind = 'salu'
            if op.startswith('s_load') or op.startswith('s_buffer_load') or op in ('s_memtime', 's_memrealtime'):
                self.kind = 'smem'
                self.dst = R(ops[0])
                for o in ops[1:]: self.src |= R(o)
            elif op.startswith('s_cmp') or op.startswith('s_bitcmp'):
                for o in ops: self.src |= R(o)
            elif op.startswith('s_cbranch') or op in ('s_branch', 's_barrier', 's_waitcnt', 's_nop', 's_endpgm', 's_sleep', 's_setprio'):
                if op == 's_cbranch_vccnz' or op == 's_cbranch_vccz': self.src |= R('vcc')
                if op.startswith('s_cbranch_exec'): self.src |= R('exec')
            elif 'saveexec' in op:
                self.dst = R(ops[0]) | R('exec'); self.src = R(ops[1]) | R('exec')
            else:
                self.dst = R(ops[0])
                for o in ops[1:]: self.src |= R(o)
                if op in ('s_addk_i32', 's_mulk_i32'): self.src |= R(ops[0])
        else:
            raise ValueError('unknown instruction ' + text)

    def states(self):
        if self.op == 's_nop': return int(self.ops[0], 0) + 1
        return 1

def isv(r): return r[0] in 'va'

def need_states(p, c):
    n = 0
    vd = {r for r in p.dst if isv(r)}
    sd = {r for r in p.dst if r[0] == 's'}
    call = c.src | c.srcC
    if p.kind == 'valu':
        if p.op.startswith('v_dot'):
            same = c.op == p.op
            if same:
                ab = parse_regs(c.ops[1]) | parse_regs(c.ops[2])
                if vd & ab: n = max(n, 3)
            elif vd & (call | c.dst): n = max(n, 3)
        if c.kind == 'mfma' and vd & call: n = max(n, 2)
        if p.trans and c.kind == 'valu' and not c.trans and vd & (c.src): n = max(n, 1)
        if p.trans and c.kind in ('mfma',) and vd & call: n = max(n, 2)
        if c.kind == 'valu':
            b = c.op
            if (b.startswith('v_permlane')) and vd & c.src: n = max(n, 2)
            if c.isdpp and vd & c.src: n = max(n, 2)
            if (b.startswith('v_readfirstlane') or b.startswith('v_readlane')) and vd & c.src: n = max(n, 1)
            if sd & c.src:
                n = max(n, 2)
                if b.startswith('v_readlane') or b.startswith('v_writelane'): n = max(n, 4)
            if sd & {('s',126),('s',127)} and c.isdpp: n = max(n, 5)
        if c.kind == 'vmem' and sd & c.src: n = max(n, 5)
        if c.kind in ('salu', 'smem') and sd & c.src: n = max(n, 3)
        if c.kind == 'mfma' and sd & {('s',126),('s',127)}: n = max(n, 4)
    if p.kind == 'mfma':
        big = 12 if p.passes == 8 else 8
        if c.kind == 'mfma':
            if p.dst & c.src: n = max(n, big)
            if p.dst & c.srcC:
                if not (c.srcC == p.dst and c.passes == p.passes): n = max(n, 10 if p.passes == 8 else 6)
            if (p.dst & c.dst) and not (c.srcC == p.dst and c.dst == p.dst and c.passes == p.passes):
                n = max(n, 10 if p.passes == 8 else 6)
        else:
            if p.dst & (c.src | c.dst): n = max(n, big)
        if c.kind == 'valu' and p.srcC & c.dst: n = max(n, 7 if p.passes == 8 else 3)
    if p.kind == 'salu' and ('s', 124) in p.dst:
        if c.kind == 'vmem' and c.lds: n = max(n, 1)
    if p.kind == 'vmem' and '_store' in p.op and ('x4' in p.op or 'x3' in p.op):
        data = parse_regs(p.ops[0]) if p.op.startswith('buffer') else parse_regs(p.ops[1])
        if c.kind == 'valu' and data & c.dst: n = max(n, 2)
        elif data & c.dst: n = max(n, 1)
    if p.kind == 'ds' and p.op.startswith('ds_write') and ('b128' in p.op or 'b96' in p.op):
        data = parse_regs(p.ops[1])
        if c.kind == 'valu' and data & c.dst: n = max(n, 2)
    return n

MAXLOOK = 22

class Kern:
    def __init__(self, name):
        self.name = name
        self.items = []
        self.nv = 0; self.ns = 0; self.na = 0
        self.lblc = 0
    def __call__(self, text):
        for line in text.split('\n'):
            line = line.strip()
            if not line or line.startswith(';'):
                if line: self.items.append(('raw', '    ' + line))
                continue
            if line.endswith(':'):
                self.items.append(('label', line[:-1])); continue
            self.items.append(Ins(line))
    def comment(self, t): self.items.append(('raw', '    ; ' + t))
    def label(self, n): self.items.append(('label', n))
    def newlabel(self, p='L'):
        self.lblc += 1
        return f"{p}_{self.name}_{self.lblc}"
    def mark(self, m): self.items.append((m,))
    def align(self, n): self.items.append(('raw', f'    .p2align {n}'))

    def fix_hazards(self):
        out = []
        hist = []
        def required(ins, hist):
            need = 0; dist = 0
            for p in reversed(hist):
                n = need_states(p, ins)
                if n > dist: need = max(need, n - dist)
                dist += p.states()
                if dist >= MAXLOOK: break
            return need
        loop_start = []
        for it in self.items:
            if isinstance(it, Ins):
                nd = required(it, hist)
                while nd > 0:
                    k = min(nd, 16)
                    nop = Ins(f's_nop {k-1}')
                    out.append(nop); hist.append(nop); nd -= k
                out.append(it); hist.append(it)
                hist = hist[-40:]
            else:
                if it[0] == 'loop_begin':
                    loop_start.append(len(out))
                if it[0] == 'loop_end':
                    st = loop_start.pop()
                    body = [x for x in out[st:] if isinstance(x, Ins)]
                    h = list(body[-40:])
                    extra = 0
                    dist_in = 0
                    for x in body[:30]:
                        nd = required(x, h)
                        if nd > 0: extra = max(extra, nd)
                        h.append(x)
                    if extra > 0:
                        idx = len(out) - 1
                        while not isinstance(out[idx], Ins): idx -= 1
                        k = extra
                        while k > 0:
                            kk = min(k, 16)
                            out.insert(idx, Ins(f's_nop {kk-1}')); k -= kk
                        print(f"[{self.name}] loop back-edge needed {extra} extra states")
                if it[0] == 'label':
                    pass
                out.append(it)
        self.items = out

    def verify_waits(self):
        trace = []
        stack = []
        for it in self.items:
            if isinstance(it, Ins):
                trace.append(it)
            elif it[0] == 'loop_begin':
                stack.append(len(trace))
            elif it[0] == 'loop_end':
                st = stack.pop()
                body = trace[st:]
                trace.extend(body)
        vm = []; lg = []
        errs = 0
        for idx, ins in enumerate(trace):
            if ins.op == 's_waitcnt':
                t = ins.text
                m = re.search(r'vmcnt\((\d+)\)', t)
                if m:
                    n = int(m.group(1))
                    while len(vm) > n: vm.pop(0)
                m = re.search(r'lgkmcnt\((\d+)\)', t)
                if m:
                    n = int(m.group(1))
                    if any(k == 'smem' for k, _ in lg):
                        if n == 0: lg = []
                    else:
                        while len(lg) > n: lg.pop(0)
                continue
            touched = ins.src | ins.dst | ins.srcC
            for q, nm in ((vm, 'vmcnt'), (lg, 'lgkmcnt')):
                for k, d in q:
                    if d & touched:
                        if (d & (ins.src | ins.srcC)) or not ((ins.kind == 'vmem' and nm == 'vmcnt') or (ins.kind == 'ds' and nm == 'lgkmcnt' and k == 'ds')):
                            print(f"[{self.name}] WAIT ERROR ({nm}): '{ins.text}' touches pending {sorted(d & touched)[:4]}")
                            errs += 1
                            break
            if ins.kind == 'vmem':
                vm.append(('vmem', set(ins.dst)))
                if len(vm) > 63: print(f"[{self.name}] vmcnt overflow at {ins.text}"); errs += 1
            elif ins.kind == 'ds':
                lg.append(('ds', set(ins.dst)))
            elif ins.kind == 'smem':
                lg.append(('smem', set(ins.dst)))
                lg.append(('smem', set()))
            if len(lg) > 15:
                pass
        return errs

    def regs_used(self):
        mv = ms = ma = -1
        for it in self.items:
            if isinstance(it, Ins):
                for r in it.src | it.dst | it.srcC:
                    if r[0] == 'v': mv = max(mv, r[1])
                    elif r[0] == 'a': ma = max(ma, r[1])
                    elif r[0] == 's' and r[1] < 102: ms = max(ms, r[1])
        return mv + 1, ms + 1, ma + 1

    def text(self):
        o = []
        for it in self.items:
            if isinstance(it, Ins): o.append('    ' + it.text)
            elif it[0] == 'label': o.append(it[1] + ':')
            elif it[0] == 'raw': o.append(it[1])
        return '\n'.join(o)

class Alloc:
    def __init__(self, start, limit, prefix):
        self.next = start; self.limit = limit; self.p = prefix
    def get(self, n=1, align=None):
        if align is None: align = 1 if n == 1 else (2 if n in (2, 3) else 4)
        if self.p == 'v' and n > 1: align = max(align, 2)
        b = (self.next + align - 1) // align * align
        self.next = b + n
        assert self.next <= self.limit, f"out of {self.p} regs: {self.next}"
        return b

def vr(b, n=1): return f"v{b}" if n == 1 else f"v[{b}:{b+n-1}]"
def sr(b, n=1): return f"s{b}" if n == 1 else f"s[{b}:{b+n-1}]"
def ar(b, n=1): return f"a{b}" if n == 1 else f"a[{b}:{b+n-1}]"
```

```python
from asmlib import *

class Gemm:
    def __init__(self, k, va, sa, *, BT, RS, nf, nchunks, S, G, lds_base=0, has_x=True, nt=2):
        self.k = k; self.va = va; self.sa = sa
        self.BT = BT; self.RS = RS; self.nf = nf; self.nt = nt; self.n = nchunks; self.S = S; self.G = G
        self.has_x = has_x
        self.XB = BT * 128 if has_x else 0
        self.WB = 64 * RS
        self.xring = lds_base
        self.wring = lds_base + S * self.XB
        self.lds_end = self.wring + S * self.WB
        assert S * self.XB <= 65536 and S * self.WB <= 65536
        self.acc = [[va.get(4) for f in range(nf)] for t in range(nt)] if has_x else None
        self.xf = [[[va.get(4) for t in range(nt)] for ks in range(G)] for s in range(2)] if has_x else None
        self.wf = [[[va.get(4) for f in range(nf)] for ks in range(G)] for s in range(2)]
        self.xaddr = [va.get() for ks in range(2)] if has_x else None
        self.waddr = [va.get() for f in range(nf)]
        self.nxp = BT // 32 if has_x else 0
        self.nwp = (self.WB // 1024) // 4
        self.xvoff = [va.get() for m in range(self.nxp)]
        self.wvoff = [va.get() for m in range(self.nwp)]
        self.s_kx = sa.get(); self.s_kw = sa.get()
        self.s_w1024 = sa.get()
        self.w_dma = None
        self.hook = None

    def setup_frag_addrs(self, v_l, s_tb0, s_fb0, tmp):
        k = self.k; t0, t1, t2, t3 = tmp
        if self.has_x:
            k(f"v_and_b32 v{t0}, 15, v{v_l}")
            k(f"v_lshrrev_b32 v{t1}, 4, v{v_l}")
            k(f"v_lshrrev_b32 v{t2}, 1, v{t0}")
            for ks in range(2):
                k(f"v_add_u32 v{t3}, {4*ks}, v{t1}")
                k(f"v_xor_b32 v{t3}, v{t3}, v{t2}")
                k(f"v_lshlrev_b32 v{t3}, 4, v{t3}")
                k(f"v_lshl_add_u32 v{self.xaddr[ks]}, v{t0}, 7, v{t3}")
            st = self.sa.get()
            k(f"s_lshl_b32 s{st}, s{s_tb0}, 11")
            k(f"s_add_u32 s{st}, s{st}, {self.xring}")
            for ks in range(2):
                k(f"v_add_u32 v{self.xaddr[ks]}, s{st}, v{self.xaddr[ks]}")
        k(f"v_and_b32 v{t0}, 15, v{v_l}")
        k(f"v_lshrrev_b32 v{t1}, 4, v{v_l}")
        k(f"v_lshrrev_b32 v{t2}, 2, v{t0}")
        k(f"v_and_b32 v{t0}, 3, v{t0}")
        k(f"v_lshl_add_u32 v{t3}, v{t1}, 3, v{t2}")
        k(f"v_lshlrev_b32 v{t3}, {self.RS.bit_length()-1}, v{t3}")
        k(f"v_lshl_add_u32 v{t3}, v{t0}, 3, v{t3}")
        k(f"v_add_u32 v{t3}, {self.wring}, v{t3}")
        k(f"v_and_b32 v{t1}, 1, v{t1}")
        if self.RS == 128:
            k(f"v_lshrrev_b32 v{t2}, 1, v{t2}")
            k(f"v_lshl_or_b32 v{t2}, v{t1}, 1, v{t2}")
        else:
            k(f"v_lshl_or_b32 v{t2}, v{t1}, 2, v{t2}")
        for f in range(self.nf):
            k(f"v_mov_b32 v{t0}, s{s_fb0}")
            if f: k(f"v_add_u32 v{t0}, {f}, v{t0}")
            k(f"v_xor_b32 v{t0}, v{t0}, v{t2}")
            k(f"v_lshl_add_u32 v{self.waddr[f]}, v{t0}, 5, v{t3}")

    def setup_x_dma(self, v_l, s_w, s_tok0, pitch, tmp):
        k = self.k; t0, t1, t2, t3 = tmp
        s1 = self.sa.get(); s2 = self.sa.get()
        k(f"s_and_b32 s{s1}, s{s_w}, 1")
        k(f"s_lshl_b32 s{s1}, s{s1}, 2")
        k(f"v_lshrrev_b32 v{t0}, 4, v{v_l}")
        k(f"v_add_u32 v{t0}, s{s1}, v{t0}")
        k(f"v_and_b32 v{t0}, 7, v{t0}")
        k(f"v_and_b32 v{t1}, 7, v{v_l}")
        k(f"v_xor_b32 v{t0}, v{t0}, v{t1}")
        k(f"v_lshlrev_b32 v{t0}, 4, v{t0}")
        k(f"s_lshl_b32 s{s2}, s{s_w}, 3")
        k(f"s_add_u32 s{s2}, s{s2}, s{s_tok0}")
        k(f"v_lshrrev_b32 v{t1}, 3, v{v_l}")
        k(f"v_add_u32 v{t1}, s{s2}, v{t1}")
        k(f"s_mov_b32 s{s1}, {pitch}")
        k(f"v_mul_lo_u32 v{t1}, v{t1}, s{s1}")
        k(f"v_add_u32 v{self.xvoff[0]}, v{t0}, v{t1}")
        for m in range(1, self.nxp):
            k(f"v_add_u32 v{self.xvoff[m]}, {32*pitch*m}, v{self.xvoff[0]}")
        self.xstep = 128

    def setup_w_dma(self, v_l, s_w, s_colbytes, pitch, tmp, nvalid_chunks=None):
        k = self.k; t0, t1, t2, t3 = tmp
        s1 = self.sa.get(); s2 = self.sa.get()
        if self.RS == 128:
            k(f"s_and_b32 s{s1}, s{s_w}, 1")
            k(f"s_lshl_b32 s{s1}, s{s1}, 1")
            k(f"v_bfe_u32 v{t0}, v{v_l}, 4, 1")
            k(f"v_or_b32 v{t0}, s{s1}, v{t0}")
            k(f"v_lshlrev_b32 v{t0}, 1, v{t0}")
            k(f"v_and_b32 v{t1}, 7, v{v_l}")
            k(f"v_xor_b32 v{t0}, v{t0}, v{t1}")
            k(f"v_lshrrev_b32 v{t1}, 3, v{v_l}")
            rows_per_piece = 8
        else:
            k(f"s_lshr_b32 s{s1}, s{s_w}, 1")
            k(f"s_and_b32 s{s1}, s{s1}, 1")
            k(f"s_lshl_b32 s{s1}, s{s1}, 2")
            k(f"v_lshrrev_b32 v{t1}, 4, v{v_l}")
            k(f"v_or_b32 v{t0}, s{s1}, v{t1}")
            k(f"v_lshlrev_b32 v{t0}, 1, v{t0}")
            k(f"v_and_b32 v{t2}, 15, v{v_l}")
            k(f"v_xor_b32 v{t0}, v{t0}, v{t2}")
            rows_per_piece = 4
        self.v_wchunk = t0
        mask = None
        if nvalid_chunks is not None:
            mask = self.sa.get(2)
            k(f"v_cmp_gt_u32 s[{mask}:{mask+1}], {nvalid_chunks}, v{t0}")
        k(f"s_mul_i32 s{s2}, s{s_w}, {rows_per_piece}")
        k(f"v_add_u32 v{t1}, s{s2}, v{t1}")
        k(f"s_mov_b32 s{s1}, {pitch}")
        k(f"v_mul_lo_u32 v{t1}, v{t1}, s{s1}")
        k(f"v_lshl_add_u32 v{t1}, v{t0}, 4, v{t1}")
        k(f"v_add_u32 v{self.wvoff[0]}, s{s_colbytes}, v{t1}")
        for m in range(1, self.nwp):
            k(f"v_add_u32 v{self.wvoff[m]}, {4*rows_per_piece*pitch*m}, v{self.wvoff[0]}")
        self.wstep = 64 * pitch
        return mask

    def init_scalars(self, s_w):
        k = self.k
        k(f"s_mov_b32 s{self.s_kx}, 0")
        k(f"s_mov_b32 s{self.s_kw}, 0")
        k(f"s_lshl_b32 s{self.s_w1024}, s{s_w}, 10")

    def ndma(self):
        return self.nxp + sum(len(d) for d in self.w_dma)

    def dma(self, c):
        k = self.k; st = c % self.S
        for m in range(self.nxp):
            k(f"s_add_u32 m0, s{self.s_w1024}, {self.xring + st*self.XB + m*4096}")
            k(f"buffer_load_dwordx4 v{self.xvoff[m]}, s[{self.x_srd}:{self.x_srd+3}], s{self.s_kx} offen lds")
        for m in range(self.nwp):
            first = True
            for (srd, mask, voff) in self.w_dma[m]:
                if first:
                    k(f"s_add_u32 m0, s{self.s_w1024}, {self.wring + st*self.WB + m*4096}")
                    first = False
                if mask is not None: k(f"s_mov_b64 exec, s[{mask}:{mask+1}]")
                k(f"buffer_load_dwordx4 v{voff}, s[{srd}:{srd+3}], s{self.s_kw} offen lds")
        if any(d[1] is not None for dd in self.w_dma for d in dd):
            k("s_mov_b64 exec, -1")
        if self.has_x: k(f"s_add_u32 s{self.s_kx}, s{self.s_kx}, {self.xstep}")
        k(f"s_add_u32 s{self.s_kw}, s{self.s_kw}, {self.wstep}")

    def reads(self, q):
        G = self.G; s = q & 1
        c = q * G // 2; st = c % self.S
        out = []
        for j in range(G):
            ks = (q * G + j) % 2
            if self.has_x:
                for t in range(self.nt):
                    out.append(f"ds_read_b128 {vr(self.xf[s][j][t],4)}, v{self.xaddr[ks]} offset:{st*self.XB + t*2048}")
            for f in range(self.nf):
                for hf in range(2):
                    off = st*self.WB + ks*32*self.RS + hf*4*self.RS
                    out.append(f"ds_read_b64_tr_b16 {vr(self.wf[s][j][f]+2*hf,2)}, v{self.waddr[f]} offset:{off}")
        return out

    def mfmas(self, q):
        s = q & 1; out = []
        for j in range(self.G):
            if self.has_x:
                for f in range(self.nf):
                    for t in range(self.nt):
                        a = self.acc[t][f]
                        out.append(f"v_mfma_f32_16x16x32_bf16 {vr(a,4)}, {vr(self.wf[s][j][f],4)}, {vr(self.xf[s][j][t],4)}, {vr(a,4)}")
            if self.hook: out += self.hook(s, j)
        return out

    def zero_acc(self):
        if self.has_x:
            for t in range(self.nt):
                for f in range(self.nf):
                    for r in range(4): self.k(f"v_mov_b32 v{self.acc[t][f]+r}, 0")

    def prologue_dma(self):
        for c in range(min(self.S, self.n)): self.dma(c)
        self.issued = min(self.S, self.n) - 1

    def mainloop(self, extra_vm=0):
        k = self.k; n = self.n; S = self.S; G = self.G
        nd = self.ndma()
        ngroups = n * 2 // G
        def chunk_ready(c):
            allowed = max(0, min(self.issued, n - 1) - c)
            k(f"s_waitcnt vmcnt({allowed*nd})")
            k("s_barrier")
            nxt = c + S - 1
            if nxt > self.issued and nxt < n:
                self.dma(nxt); self.issued = nxt
        chunk_ready(0)
        for r in self.reads(0): k(r)
        for q in range(ngroups):
            rd = []
            if q + 1 < ngroups:
                k("s_waitcnt lgkmcnt(0)")
                if ((q + 1) * G) % 2 == 0:
                    chunk_ready((q + 1) * G // 2)
                rd = self.reads(q + 1)
            else:
                k("s_waitcnt lgkmcnt(0)")
            mf = self.mfmas(q)
            per = max(1, -(-len(rd) * 2 // max(1, len(mf))))
            for ins in mf:
                k(ins)
                for _ in range(per):
                    if rd: k(rd.pop(0))
            for r in rd: k(r)
```

```python
import sys, math
from asmlib import *
from gemm import Gemm

NAME = "sequential_preLN__grouped_kv_mqa__mixer_gmlp__prompt"
S_TOK, D, H, DH, F, FH = 2048, 512, 32, 16, 1792, 896

WS_Q   = 0x000000
WS_K   = 0x200000
WS_V   = 0x210000
WS_KN  = 0x220000
WS_CS  = 0x221000
WS_O   = 0x300000
WS_H   = 0x500000
WS_HS  = 0x700000
WS_Z1  = 0x800000
WS_Z2  = 0xC00000
WS_Z2N = 0x1000000
WS_U   = 0x1400000

P_X, P_WQ, P_WK, P_WV, P_WO, P_BX, P_WIN, P_WSP = 16, 18, 20, 22, 24, 26, 28, 30
P_BSP, P_WOUT, P_OUT, P_DBG, P_WS = 32, 34, 36, 38, 40

LOG2E = 1.4426950408889634
def f2u(x):
    import struct
    return struct.unpack('<I', struct.pack('<f', x))[0]

def load_args(k):
    k("s_load_dwordx16 s[16:31], s[0:1], 0")
    k("s_load_dwordx8 s[32:39], s[0:1], 64")
    k("s_load_dwordx2 s[40:41], s[0:1], 96")

def srd(k, dst, ptr, nbytes, off=0):
    if off:
        k(f"s_add_u32 s{dst}, s{ptr}, {off}")
        k(f"s_addc_u32 s{dst+1}, s{ptr+1}, 0")
    else:
        k(f"s_mov_b32 s{dst}, s{ptr}")
        k(f"s_mov_b32 s{dst+1}, s{ptr+1}")
    k(f"s_mov_b32 s{dst+2}, {nbytes}")
    k(f"s_mov_b32 s{dst+3}, 0x00020000")

def lane_wave(k, va, sa):
    v_l = va.get(); s_w = sa.get()
    k(f"v_lshrrev_b32 v{v_l}, 6, v0")
    k(f"v_readfirstlane_b32 s{s_w}, v{v_l}")
    k(f"v_and_b32 v{v_l}, 63, v0")
    return v_l, s_w

def reduce_g(k, v, t):
    k(f"v_mov_b32 v{t}, v{v}")
    k(f"v_permlane16_swap_b32 v{t}, v{v}")
    k(f"v_add_f32 v{v}, v{v}, v{t}")
    k(f"v_mov_b32 v{t}, v{v}")
    k(f"v_permlane32_swap_b32 v{t}, v{v}")
    k(f"v_add_f32 v{v}, v{v}, v{t}")

def pack_swap(k, out4, a4, b4):
    k(f"v_cvt_pk_bf16_f32 v{out4}, v{a4}, v{a4+1}")
    k(f"v_cvt_pk_bf16_f32 v{out4+1}, v{a4+2}, v{a4+3}")
    k(f"v_cvt_pk_bf16_f32 v{out4+2}, v{b4}, v{b4+1}")
    k(f"v_cvt_pk_bf16_f32 v{out4+3}, v{b4+2}, v{b4+3}")
    k(f"v_permlane16_swap_b32 v{out4}, v{out4+2}")
    k(f"v_permlane16_swap_b32 v{out4+1}, v{out4+3}")

def ln_finish(k, s1, s2, n, tmp, s_eps):
    k(f"v_mul_f32 v{s1}, {f2u(1.0/n):#x}, v{s1}")
    k(f"v_mul_f32 v{s2}, {f2u(1.0/n):#x}, v{s2}")
    k(f"v_fma_f32 v{s2}, -v{s1}, v{s1}, v{s2}")
    k(f"v_max_f32 v{s2}, 0, v{s2}")
    k(f"v_add_f32 v{s2}, s{s_eps}, v{s2}")
    k(f"v_rsq_f32 v{s2}, v{s2}")

kernels = []
def finish(k, lds, grid, block=256):
    k.fix_hazards()
    e = k.verify_waits()
    assert e == 0, f"{k.name}: wait errors"
    nv, ns, na = k.regs_used()
    k.nv, k.ns, k.na = nv, ns, na
    kernels.append((k, lds, grid, block))
    print(f"{k.name}: vgprs={nv} sgprs={ns} agprs={na} lds={lds} insts={sum(1 for i in k.items if isinstance(i, Ins))}", file=sys.stderr)

def gen_k1():
    k = Kern("k1_kernel")
    NQ, NKV, NCS = 256, 32, 28
    load_args(k)
    L_end = "k1_end"; L_kv = "k1_kv"; L_cs = "k1_cs"
    k(f"s_cmp_ge_u32 s2, {NQ+NKV+NCS}")
    k(f"s_cbranch_scc1 {L_end}")
    base_items = len(k.items)
    k(f"s_cmp_lt_u32 s2, {NKV}")
    k(f"s_cbranch_scc1 {L_kv}")
    k(f"s_cmp_lt_u32 s2, {NKV+NCS}")
    k(f"s_cbranch_scc1 {L_cs}")

    def role(kind):
        va = Alloc(1, 256, 'v'); sa = Alloc(44, 100, 's')
        v_l, s_w = lane_wave(k, va, sa)
        tmp = [va.get() for _ in range(4)]
        s_t = sa.get(); s_j = sa.get(); s_tok0 = sa.get(); s_col = sa.get(); s_tb0 = sa.get(); s_fb0 = sa.get()
        sx = sa.get(4); sw = sa.get(4); sw2 = sa.get(4); so = sa.get(4); so2 = sa.get(4)
        s_eps = sa.get()
        if kind == 'q':
            k(f"s_sub_u32 s{s_t}, s2, {NKV+NCS}")
            k(f"s_and_b32 s{s_j}, s{s_t}, 7")
            k(f"s_lshr_b32 s{s_t}, s{s_t}, 3")
        elif kind == 'kv':
            k(f"s_mov_b32 s{s_t}, s2")
            k(f"s_mov_b32 s{s_j}, 0")
        else:
            k(f"s_sub_u32 s{s_j}, s2, {NKV}")
            k(f"s_mov_b32 s{s_t}, 0")
        k(f"s_lshl_b32 s{s_tok0}, s{s_t}, 6")
        k(f"s_lshl_b32 s{s_col}, s{s_j}, 7")
        has_x = kind != 'cs'
        nf = {'q': 2, 'kv': 1, 'cs': 1}[kind]
        g = Gemm(k, va, sa, BT=64, RS=128, nf=nf, nchunks=8, S=4, G=2, has_x=has_x)
        if has_x:
            k(f"s_and_b32 s{s_tb0}, s{s_w}, 1")
            k(f"s_lshl_b32 s{s_tb0}, s{s_tb0}, 1")
        else:
            k(f"s_mov_b32 s{s_tb0}, 0")
        if kind == 'q':
            k(f"s_lshr_b32 s{s_fb0}, s{s_w}, 1")
            k(f"s_lshl_b32 s{s_fb0}, s{s_fb0}, 1")
        elif kind == 'kv':
            k(f"s_lshr_b32 s{s_fb0}, s{s_w}, 1")
        else:
            k(f"s_mov_b32 s{s_fb0}, s{s_w}")
        k(f"s_mov_b32 s{s_eps}, {f2u(1e-5):#x}")
        k("s_waitcnt lgkmcnt(0)")
        if has_x:
            srd(k, sx, P_X, S_TOK*D*2); g.x_srd = sx
            g.setup_x_dma(v_l, s_w, s_tok0, D*2, tmp)
        if kind == 'q':
            srd(k, sw, P_WQ, D*D*2)
            g.setup_w_dma(v_l, s_w, s_col, D*2, tmp)
            g.w_dma = [[(sw, None, g.wvoff[m])] for m in range(g.nwp)]
        elif kind == 'cs':
            srd(k, sw, P_WIN, D*F*2)
            g.setup_w_dma(v_l, s_w, s_col, F*2, tmp)
            g.w_dma = [[(sw, None, g.wvoff[m])] for m in range(g.nwp)]
        else:
            srd(k, sw, P_WK, D*DH*2); srd(k, sw2, P_WV, D*DH*2)
            s_zero = sa.get()
            k(f"s_mov_b32 s{s_zero}, 0")
            g.setup_w_dma(v_l, s_w, s_zero, 32, tmp)
            mk = sa.get(2); mv = sa.get(2)
            vc = g.v_wchunk
            k(f"v_cmp_gt_u32 s[{mk}:{mk+1}], 2, v{vc}")
            k(f"v_lshrrev_b32 v{tmp[2]}, 1, v{vc}")
            k(f"v_cmp_eq_u32 s[{mv}:{mv+1}], 1, v{tmp[2]}")
            vv = [va.get() for _ in range(g.nwp)]
            for m in range(g.nwp):
                k(f"v_subrev_u32 v{vv[m]}, 32, v{g.wvoff[m]}")
            g.w_dma = [[(sw, mk, g.wvoff[m]), (sw2, mv, vv[m])] for m in range(g.nwp)]
        g.init_scalars(s_w)
        g.prologue_dma()
        g.setup_frag_addrs(v_l, s_tb0, s_fb0, tmp)
        g.zero_acc()
        ones = va.get(4)
        for r in range(4): k(f"v_mov_b32 v{ones+r}, 0x3f803f80")
        cs = [va.get(4) for f in range(nf)]
        for f in range(nf):
            for r in range(4): k(f"v_mov_b32 v{cs[f]+r}, 0")
        st1 = [va.get() for t in range(2)]; st2 = [va.get() for t in range(2)]
        if has_x:
            for t in range(2):
                k(f"v_mov_b32 v{st1[t]}, 0"); k(f"v_mov_b32 v{st2[t]}, 0")
        def hook(s, j):
            o = []
            for f in range(nf):
                o.append(f"v_mfma_f32_16x16x32_bf16 {vr(cs[f],4)}, {vr(g.wf[s][j][f],4)}, {vr(ones,4)}, {vr(cs[f],4)}")
            if has_x:
                for t in range(2):
                    for r in range(4):
                        x = g.xf[s][j][t] + r
                        o.append(f"v_dot2_f32_bf16 v{st2[t]}, v{x}, v{x}, v{st2[t]}")
                        o.append(f"v_dot2_f32_bf16 v{st1[t]}, v{x}, v{ones}, v{st1[t]}")
            return o
        g.hook = hook
        g.mainloop()
        if kind == 'cs':
            srd(k, so, P_WS, F*4, WS_CS)
            k(f"v_lshrrev_b32 v{tmp[0]}, 4, v{v_l}")
            k(f"v_lshlrev_b32 v{tmp[0]}, 4, v{tmp[0]}")
            k(f"s_lshl_b32 s{s_col}, s{s_col}, 1")
            k(f"s_lshl_b32 s{s_t}, s{s_w}, 6")
            k(f"s_add_u32 s{s_col}, s{s_col}, s{s_t}")
            k(f"v_add_u32 v{tmp[0]}, s{s_col}, v{tmp[0]}")
            k(f"v_and_b32 v{tmp[1]}, 15, v{v_l}")
            k(f"v_cmp_eq_u32 vcc, 0, v{tmp[1]}")
            k(f"s_and_saveexec_b64 s[{so2}:{so2+1}], vcc")
            k(f"buffer_store_dwordx4 {vr(cs[0],4)}, v{tmp[0]}, s[{so}:{so+3}], 0 offen")
            k("s_endpgm")
            return
        for t in range(2):
            reduce_g(k, st1[t], tmp[0]); reduce_g(k, st2[t], tmp[0])
            ln_finish(k, st1[t], st2[t], D, tmp, s_eps)
        if kind == 'q':
            sc = sa.get()
            k(f"s_mov_b32 s{sc}, {f2u(0.25*LOG2E):#x}")
            for t in range(2): k(f"v_mul_f32 v{st2[t]}, s{sc}, v{st2[t]}")
        for t in range(2):
            for f in range(nf):
                for r in range(4):
                    a = g.acc[t][f] + r
                    k(f"v_fma_f32 v{a}, -v{st1[t]}, v{cs[f]+r}, v{a}")
                    k(f"v_mul_f32 v{a}, v{st2[t]}, v{a}")
        outs = [va.get(4) for f in range(nf)]
        if kind == 'q':
            srd(k, so, P_WS, 0x200000, WS_Q)
            k(f"s_lshl_b32 s{s_t}, s{s_t}, 1")
            k(f"s_and_b32 s{s_col}, s{s_w}, 1")
            k(f"s_add_u32 s{s_t}, s{s_t}, s{s_col}")
            k(f"s_lshl_b32 s{s_t}, s{s_t}, 5")
            k(f"s_lshl_b32 s{s_j}, s{s_j}, 2")
            k(f"s_add_u32 s{s_t}, s{s_t}, s{s_j}")
            k(f"s_add_u32 s{s_t}, s{s_t}, s{s_fb0}")
            k(f"s_lshl_b32 s{s_t}, s{s_t}, 10")
            k(f"v_lshlrev_b32 v{tmp[0]}, 4, v{v_l}")
            for f in range(nf):
                pack_swap(k, outs[f], g.acc[0][f], g.acc[1][f])
                k(f"buffer_store_dwordx4 {vr(outs[f],4)}, v{tmp[0]}, s[{so}:{so+3}], s{s_t} offen offset:{f*1024}")
            k("s_endpgm")
            return
        nrm = [va.get() for t in range(2)]
        for t in range(2):
            a = g.acc[t][0]
            k(f"v_mul_f32 v{nrm[t]}, v{a}, v{a}")
            for r in range(1, 4): k(f"v_fmac_f32 v{nrm[t]}, v{a+r}, v{a+r}")
            reduce_g(k, nrm[t], tmp[0])
        k(f"v_max_f32 v{nrm[0]}, v{nrm[0]}, v{nrm[1]}")
        for sh in (1, 2, 4, 8):
            k(f"v_max_f32_dpp v{nrm[0]}, v{nrm[0]}, v{nrm[0]} row_ror:{sh} row_mask:0xf bank_mask:0xf")
        pack_swap(k, outs[0], g.acc[0][0], g.acc[1][0])
        k(f"s_lshl_b32 s{s_t}, s{s_t}, 1")
        k(f"s_and_b32 s{s_col}, s{s_w}, 1")
        k(f"s_add_u32 s{s_t}, s{s_t}, s{s_col}")
        srd(k, so, P_WS, 0x20000, WS_K)
        srd(k, so2, P_WS, 512, WS_KN)
        k(f"v_lshlrev_b32 v{tmp[0]}, 4, v{v_l}")
        k(f"v_and_b32 v{tmp[1]}, 31, v{v_l}")
        k(f"v_lshlrev_b32 v{tmp[1]}, 5, v{tmp[1]}")
        k(f"v_lshrrev_b32 v{tmp[2]}, 5, v{v_l}")
        k(f"v_lshl_add_u32 v{tmp[1]}, v{tmp[2]}, 4, v{tmp[1]}")
        k(f"v_add_u32 v{tmp[1]}, 0x10000, v{tmp[1]}")
        k(f"s_cmp_eq_u32 s{s_fb0}, 0")
        k(f"s_cselect_b64 vcc, -1, 0")
        k(f"v_cndmask_b32 v{tmp[0]}, v{tmp[1]}, v{tmp[0]}, vcc")
        k(f"s_lshl_b32 s{s_col}, s{s_t}, 10")
        k(f"buffer_store_dwordx4 {vr(outs[0],4)}, v{tmp[0]}, s[{so}:{so+3}], s{s_col} offen")
        k(f"s_lshl_b32 s{s_col}, s{s_fb0}, 6")
        k(f"s_add_u32 s{s_col}, s{s_col}, s{s_t}")
        k(f"s_lshl_b32 s{s_col}, s{s_col}, 2")
        k(f"v_mov_b32 v{tmp[0]}, 0")
        k(f"v_cmp_eq_u32 vcc, 0, v{v_l}")
        k(f"s_and_saveexec_b64 s[{sx}:{sx+1}], vcc")
        k(f"buffer_store_dword v{nrm[0]}, v{tmp[0]}, s[{so2}:{so2+3}], s{s_col} offen")
        k("s_endpgm")
    role('q')
    k.label(L_kv); role('kv')
    k.label(L_cs); role('cs')
    k.label(L_end); k("s_endpgm")
    finish(k, 65536, NQ+NKV+NCS)

def gen_k2():
    k = Kern("k2_kernel")
    load_args(k)
    k("s_cmp_ge_u32 s2, 256")
    k("s_cbranch_scc1 k2_end")
    va = Alloc(1, 256, 'v'); sa = Alloc(44, 100, 's')
    v_l, s_w = lane_wave(k, va, sa)
    tmp = [va.get() for _ in range(4)]
    Q = [va.get(4), va.get(4)]
    C = [va.get(16), va.get(16)]
    S = [va.get(16), va.get(16)]
    P = [va.get(8), va.get(8)]
    O = [va.get(16), va.get(16)]
    Kf = [va.get(4), va.get(4)]
    Vf = [va.get(8), va.get(8)]
    vK = va.get(); vV = va.get(); vVinc = va.get(); vsrc = va.get()
    s_t = sa.get(); s_j = sa.get(); s_head = sa.get(); s_q = sa.get(); s_it = sa.get(); s_barit = sa.get(); s_m = sa.get(); s_off = sa.get()
    sq = sa.get(4); skv = sa.get(4); so = sa.get(4); sn = sa.get(4)
    CONST = 131072
    k(f"s_and_b32 s{s_j}, s2, 7")
    k(f"s_lshr_b32 s{s_t}, s2, 3")
    k(f"s_lshl_b32 s{s_head}, s{s_j}, 2")
    k(f"s_add_u32 s{s_head}, s{s_head}, s{s_w}")
    k(f"s_lshl_b32 s{s_q}, s{s_t}, 6")
    k(f"s_add_u32 s{s_q}, s{s_q}, s{s_head}")
    k(f"s_lshl_b32 s{s_q}, s{s_q}, 10")
    k(f"v_lshlrev_b32 v{vsrc}, 4, v{v_l}")
    k("s_waitcnt lgkmcnt(0)")
    srd(k, sq, P_WS, 0x200000, WS_Q)
    srd(k, skv, P_WS, 0x20000, WS_K)
    srd(k, sn, P_WS, 512, WS_KN)
    srd(k, so, P_WS, 0x200000, WS_O)
    k(f"buffer_load_dwordx4 {vr(Q[0],4)}, v{vsrc}, s[{sq}:{sq+3}], s{s_q} offen")
    k(f"s_add_u32 s{s_q}, s{s_q}, {32*1024}")
    k(f"buffer_load_dwordx4 {vr(Q[1],4)}, v{vsrc}, s[{sq}:{sq+3}], s{s_q} offen")
    k(f"v_lshlrev_b32 v{tmp[0]}, 2, v{v_l}")
    k(f"buffer_load_dword v{tmp[2]}, v{tmp[0]}, s[{sn}:{sn+3}], 0 offen")
    k(f"buffer_load_dword v{tmp[3]}, v{tmp[0]}, s[{sn}:{sn+3}], 0 offen offset:256")
    k(f"s_lshl_b32 s{s_off}, s{s_w}, 10")
    for m in range(16):
        k(f"s_add_u32 m0, s{s_off}, {m*4096}")
        k(f"s_add_u32 s{s_m}, s{s_off}, {m*4096}")
        k(f"buffer_load_dwordx4 v{vsrc}, s[{skv}:{skv+3}], s{s_m} offen lds")
        k(f"s_add_u32 m0, s{s_off}, {65536 + m*4096}")
        k(f"s_add_u32 s{s_m}, s{s_off}, {65536 + m*4096}")
        k(f"buffer_load_dwordx4 v{vsrc}, s[{skv}:{skv+3}], s{s_m} offen lds")
    k(f"v_and_b32 v{S[0]}, 5, v0")
    k(f"v_cmp_eq_u32 vcc, 0, v{S[0]}")
    k(f"v_mov_b32 v{S[0]+1}, 0x3f80")
    k(f"v_cndmask_b32 v{S[0]+1}, 0, v{S[0]+1}, vcc")
    k(f"v_lshlrev_b32 v{S[0]+2}, 2, v0")
    k(f"v_add_u32 v{S[0]+2}, {CONST}, v{S[0]+2}")
    k(f"ds_write_b32 v{S[0]+2}, v{S[0]+1}")
    k(f"ds_write_b32 v{S[0]+2}, v{S[0]+1} offset:1024")
    k(f"ds_write_b32 v{S[0]+2}, v{S[0]+1} offset:2048")
    k(f"v_mov_b32 v{vK}, v{vsrc}")
    g_, i_, r_, c_ = S[1], S[1]+1, S[1]+2, S[1]+3
    hh_, rs_, a_, b_ = S[1]+4, S[1]+5, S[1]+6, S[1]+7
    k(f"v_lshrrev_b32 v{g_}, 4, v{v_l}")
    k(f"v_and_b32 v{i_}, 15, v{v_l}")
    k(f"v_lshrrev_b32 v{r_}, 2, v{i_}")
    k(f"v_and_b32 v{c_}, 3, v{i_}")
    k(f"v_lshrrev_b32 v{hh_}, 1, v{g_}")
    k(f"v_and_b32 v{rs_}, 1, v{g_}")
    k(f"v_lshlrev_b32 v{r_}, 5, v{r_}")
    k(f"v_lshl_add_u32 v{r_}, v{c_}, 3, v{r_}")
    k(f"v_lshl_add_u32 v{a_}, v{hh_}, 7, v{r_}")
    k(f"v_add_u32 v{a_}, 65536, v{a_}")
    k(f"v_xor_b32 v{hh_}, 1, v{hh_}")
    k(f"v_lshl_add_u32 v{b_}, v{hh_}, 7, v{r_}")
    k(f"v_add_u32 v{b_}, {CONST}, v{b_}")
    k(f"v_cmp_eq_u32 vcc, 0, v{rs_}")
    k(f"v_cndmask_b32 v{vV}, v{b_}, v{a_}, vcc")
    k(f"v_mov_b32 v{vVinc}, 2048")
    k(f"v_cndmask_b32 v{vVinc}, 0, v{vVinc}, vcc")
    for r in range(16):
        k(f"v_mov_b32 v{O[0]+r}, 0"); k(f"v_mov_b32 v{O[1]+r}, 0")
        k(f"v_mov_b32 v{C[0]+r}, 0"); k(f"v_mov_b32 v{C[1]+r}, 0")
    for r in range(8):
        k(f"v_mov_b32 v{P[1]+r}, 0"); k(f"v_mov_b32 v{Vf[1]+r}, 0")
    k("s_waitcnt vmcnt(32)")
    n0, n1 = S[0], S[0]+1
    for b in range(2):
        n = S[0] + b
        k(f"v_mov_b32 v{n}, 0")
        for r in range(4): k(f"v_dot2_f32_bf16 v{n}, v{Q[b]+r}, v{Q[b]+r}, v{n}")
    k(f"v_max_f32 v{n0}, v{n0}, v{n1}")
    k(f"v_mov_b32 v{n1}, v{n0}")
    k(f"v_permlane32_swap_b32 v{n1}, v{n0}")
    k(f"v_add_f32 v{n0}, v{n0}, v{n1}")
    for v in (tmp[2], tmp[3]):
        for sh in (1, 2, 4, 8):
            k(f"v_max_f32_dpp v{v}, v{v}, v{v} row_ror:{sh} row_mask:0xf bank_mask:0xf")
        k(f"v_mov_b32 v{n1}, v{v}")
        k(f"v_permlane16_swap_b32 v{n1}, v{v}")
        k(f"v_max_f32 v{v}, v{v}, v{n1}")
        k(f"v_mov_b32 v{n1}, v{v}")
        k(f"v_permlane32_swap_b32 v{n1}, v{v}")
        k(f"v_max_f32 v{v}, v{v}, v{n1}")
    k(f"v_mul_f32 v{n0}, v{n0}, v{tmp[2]}")
    k(f"v_mov_b32 v{n1}, {f2u(1600.0):#x}")
    k(f"v_cmp_nle_f32 vcc, v{n0}, v{n1}")
    k(f"v_mov_b32 v{n1}, {f2u(2.0**100):#x}")
    s_c2 = sa.get(2)
    k(f"v_cmp_nle_f32 s[{s_c2}:{s_c2+1}], v{tmp[3]}, v{n1}")
    k(f"s_or_b64 vcc, vcc, s[{s_c2}:{s_c2+1}]")
    k(f"s_mov_b32 s{s_barit}, 3")
    k("s_waitcnt vmcnt(28) lgkmcnt(0)")
    k("s_barrier")
    k("s_cmp_eq_u64 vcc, 0")
    k("s_cbranch_scc1 k2_fast")
    k("s_waitcnt vmcnt(0)")
    k("s_barrier")
    k(f"s_mov_b32 s{s_barit}, -1")
    k(f"v_mov_b32 v{tmp[0]}, 0xff800000"); k(f"v_mov_b32 v{tmp[1]}, 0xff800000")
    k(f"v_mov_b32 v{tmp[2]}, v{vK}")
    k(f"s_mov_b32 s{s_it}, 0")
    k.label("k2_maxloop"); k.mark('loop_begin')
    k(f"ds_read_b128 {vr(Kf[0],4)}, v{tmp[2]}")
    k(f"v_add_u32 v{tmp[2]}, 1024, v{tmp[2]}")
    k("s_waitcnt lgkmcnt(0)")
    for b in range(2):
        k(f"v_mfma_f32_32x32x16_bf16 {vr(S[b],16)}, {vr(Kf[0],4)}, {vr(Q[b],4)}, 0")
    for b in range(2):
        for r in range(0, 16, 2):
            k(f"v_max3_f32 v{tmp[b]}, v{S[b]+r}, v{S[b]+r+1}, v{tmp[b]}")
    k(f"s_add_u32 s{s_it}, s{s_it}, 1")
    k(f"s_cmp_lt_u32 s{s_it}, 64")
    k("s_cbranch_scc1 k2_maxloop"); k.mark('loop_end')
    for b in range(2):
        k(f"v_mov_b32 v{tmp[2]}, v{tmp[b]}")
        k(f"v_permlane32_swap_b32 v{tmp[2]}, v{tmp[b]}")
        k(f"v_max_f32 v{tmp[b]}, v{tmp[b]}, v{tmp[2]}")
        for r in range(16): k(f"v_sub_f32 v{C[b]+r}, 0, v{tmp[b]}")
    k.label("k2_fast")
    def qk(dstS, kf, blk):
        return f"v_mfma_f32_32x32x16_bf16 {vr(S[dstS],16)}, {vr(Kf[kf],4)}, {vr(Q[blk],4)}, {vr(C[blk],16)}"
    def pv(vf, m, p, blk):
        return f"v_mfma_f32_32x32x16_bf16 {vr(O[blk],16)}, {vr(Vf[vf]+4*m,4)}, {vr(P[p]+4*m,4)}, {vr(O[blk],16)}"
    def loads(kf, koff, vf, voff):
        l = [f"ds_read_b128 {vr(Kf[kf],4)}, v{vK} offset:{koff}"]
        for m in range(2):
            for hf in range(2):
                l.append(f"ds_read_b64_tr_b16 {vr(Vf[vf]+4*m+2*hf,2)}, v{vV} offset:{voff + m*512 + hf*256}")
        return l
    def step(cur, qk_ins, pv1, pv2, lds):
        s = S[cur]; p = P[cur]
        k(qk_ins)
        lds = list(lds)
        for i in range(16):
            k(f"v_exp_f32 v{s+i}, v{s+i}")
            if i == 5: k(pv1)
            if i == 10: k(pv2)
            if lds and i % 2 == 1: k(lds.pop(0))
        for i in range(8):
            k(f"v_cvt_pk_bf16_f32 v{p+i}, v{s+2*i}, v{s+2*i+1}")
    k(f"ds_read_b128 {vr(Kf[0],4)}, v{vK}")
    k("s_waitcnt lgkmcnt(0)")
    k(qk(0, 0, 0))
    k(f"s_mov_b32 s{s_it}, 0")
    k("s_nop 15")
    k.align(6)
    k.label("k2_loop"); k.mark('loop_begin')
    k(f"s_cmp_lg_u32 s{s_it}, s{s_barit}")
    k("s_cbranch_scc1 k2_nobar")
    k("s_waitcnt vmcnt(0)")
    k("s_barrier")
    k.label("k2_nobar")
    step(0, qk(1, 0, 1), pv(1, 0, 1, 1), pv(1, 1, 1, 1), loads(1, 1024, 0, 0))
    k("s_waitcnt lgkmcnt(0)")
    step(1, qk(0, 1, 0), pv(0, 0, 0, 0), pv(0, 1, 0, 0), [])
    step(0, qk(1, 1, 1), pv(0, 0, 1, 1), pv(0, 1, 1, 1), loads(0, 2048, 1, 1024))
    k("s_waitcnt lgkmcnt(0)")
    k(f"v_add_u32 v{vK}, 2048, v{vK}")
    k(f"v_add_u32 v{vV}, v{vVinc}, v{vV}")
    step(1, qk(0, 0, 0), pv(1, 0, 0, 0), pv(1, 1, 0, 0), [])
    k(f"s_add_u32 s{s_it}, s{s_it}, 1")
    k(f"s_cmp_lt_u32 s{s_it}, 32")
    k("s_cbranch_scc1 k2_loop"); k.mark('loop_end')
    k(pv(1, 0, 1, 1)); k(pv(1, 1, 1, 1))
    k(f"v_and_b32 v{tmp[0]}, 31, v{v_l}")
    k(f"v_lshlrev_b32 v{tmp[0]}, 10, v{tmp[0]}")
    k(f"v_lshrrev_b32 v{tmp[1]}, 5, v{v_l}")
    k(f"v_lshl_add_u32 v{tmp[0]}, v{tmp[1]}, 4, v{tmp[0]}")
    k(f"s_lshl_b32 s{s_t}, s{s_t}, 16")
    k(f"s_lshl_b32 s{s_head}, s{s_head}, 5")
    k(f"s_add_u32 s{s_t}, s{s_t}, s{s_head}")
    for b in range(2):
        o = O[b]; out = P[b]
        k(f"v_rcp_f32 v{tmp[2]}, v{o+8}")
        for r in range(8): k(f"v_mul_f32 v{o+r}, v{tmp[2]}, v{o+r}")
        for r in range(4): k(f"v_cvt_pk_bf16_f32 v{out+r}, v{o+2*r}, v{o+2*r+1}")
        k(f"v_permlane32_swap_b32 v{out}, v{out+2}")
        k(f"v_permlane32_swap_b32 v{out+1}, v{out+3}")
        k(f"buffer_store_dwordx4 {vr(out,4)}, v{tmp[0]}, s[{so}:{so+3}], s{s_t} offen")
        if b == 0: k(f"s_add_u32 s{s_t}, s{s_t}, {32*1024}")
    k.label("k2_end"); k("s_endpgm")
    finish(k, CONST + 3072, 256)

def gen_res_gemm(name, x_off, x_pitch, nch, p_w, w_bytes, res_ptr, res_off, out_ptr, out_off, stats):
    k = Kern(name)
    load_args(k)
    k("s_cmp_ge_u32 s2, 256")
    k(f"s_cbranch_scc1 {name}_end")
    va = Alloc(1, 256, 'v'); sa = Alloc(44, 100, 's')
    v_l, s_w = lane_wave(k, va, sa)
    tmp = [va.get() for _ in range(4)]
    s_t = sa.get(); s_j = sa.get(); s_tok0 = sa.get(); s_col = sa.get(); s_tb0 = sa.get(); s_fb0 = sa.get()
    sx = sa.get(4); sw = sa.get(4); sr_ = sa.get(4); so = sa.get(4); ss = sa.get(4)
    k(f"s_and_b32 s{s_j}, s2, 7")
    k(f"s_lshr_b32 s{s_t}, s2, 3")
    k(f"s_lshl_b32 s{s_tok0}, s{s_t}, 6")
    k(f"s_lshl_b32 s{s_col}, s{s_j}, 7")
    g = Gemm(k, va, sa, BT=64, RS=128, nf=2, nchunks=nch, S=4, G=2)
    k(f"s_and_b32 s{s_tb0}, s{s_w}, 1")
    k(f"s_lshl_b32 s{s_tb0}, s{s_tb0}, 1")
    k(f"s_lshr_b32 s{s_fb0}, s{s_w}, 1")
    k(f"s_lshl_b32 s{s_fb0}, s{s_fb0}, 1")
    k("s_waitcnt lgkmcnt(0)")
    srd(k, sx, P_WS, S_TOK*x_pitch, x_off); g.x_srd = sx
    srd(k, sw, p_w, w_bytes)
    srd(k, sr_, res_ptr, S_TOK*D*2, res_off)
    srd(k, so, out_ptr, S_TOK*D*2, out_off)
    res = [[va.get(2) for f in range(2)] for t in range(2)]
    v_ra = va.get()
    s_a = sa.get(); s_b = sa.get()
    k(f"s_lshl_b32 s{s_a}, s{s_tb0}, 4")
    k(f"s_add_u32 s{s_a}, s{s_a}, s{s_tok0}")
    k(f"v_and_b32 v{tmp[0]}, 15, v{v_l}")
    k(f"v_add_u32 v{tmp[0]}, s{s_a}, v{tmp[0]}")
    k(f"v_lshlrev_b32 v{tmp[0]}, 10, v{tmp[0]}")
    k(f"v_lshrrev_b32 v{tmp[1]}, 4, v{v_l}")
    k(f"v_lshl_add_u32 v{v_ra}, v{tmp[1]}, 3, v{tmp[0]}")
    k(f"s_lshl_b32 s{s_b}, s{s_fb0}, 5")
    k(f"s_add_u32 s{s_b}, s{s_b}, s{s_col}")
    s_b2 = sa.get()
    k(f"s_add_u32 s{s_b2}, s{s_b}, {16*1024}")
    for t in range(2):
        for f in range(2):
            k(f"buffer_load_dwordx2 {vr(res[t][f],2)}, v{v_ra}, s[{sr_}:{sr_+3}], s{s_b if t == 0 else s_b2} offen offset:{f*32}")
    g.setup_x_dma(v_l, s_w, s_tok0, x_pitch, tmp)
    g.setup_w_dma(v_l, s_w, s_col, D*2, tmp)
    g.w_dma = [[(sw, None, g.wvoff[m])] for m in range(g.nwp)]
    g.init_scalars(s_w)
    g.prologue_dma()
    g.setup_frag_addrs(v_l, s_tb0, s_fb0, tmp)
    g.zero_acc()
    g.mainloop()
    for t in range(2):
        for f in range(2):
            a = g.acc[t][f]; r = res[t][f]
            for h in range(2):
                k(f"v_lshlrev_b32 v{tmp[0]}, 16, v{r+h}")
                k(f"v_and_b32 v{tmp[1]}, 0xffff0000, v{r+h}")
                k(f"v_add_f32 v{a+2*h}, v{a+2*h}, v{tmp[0]}")
                k(f"v_add_f32 v{a+2*h+1}, v{a+2*h+1}, v{tmp[1]}")
    outs = [va.get(4) for f in range(2)]
    k(f"s_and_b32 s{s_a}, s{s_w}, 1")
    k(f"s_lshl_b32 s{s_a}, s{s_a}, 5")
    k(f"s_add_u32 s{s_a}, s{s_a}, s{s_tok0}")
    k(f"v_and_b32 v{tmp[2]}, 31, v{v_l}")
    k(f"v_add_u32 v{tmp[2]}, s{s_a}, v{tmp[2]}")
    if stats: k(f"v_lshlrev_b32 v{v_ra}, 7, v{tmp[2]}")
    k(f"v_lshlrev_b32 v{tmp[2]}, 10, v{tmp[2]}")
    k(f"v_lshrrev_b32 v{tmp[3]}, 5, v{v_l}")
    k(f"v_lshl_add_u32 v{tmp[2]}, v{tmp[3]}, 4, v{tmp[2]}")
    for f in range(2):
        pack_swap(k, outs[f], g.acc[0][f], g.acc[1][f])
        k(f"buffer_store_dwordx4 {vr(outs[f],4)}, v{tmp[2]}, s[{so}:{so+3}], s{s_b} offen offset:{f*32}")
    if stats:
        srd(k, ss, P_WS, S_TOK*128, WS_HS)
        st = va.get(4)
        for t in range(2):
            s1, s2 = st + 2*t, st + 2*t + 1
            first = True
            for f in range(2):
                for r in range(4):
                    a = g.acc[t][f] + r
                    if first:
                        k(f"v_mov_b32 v{s1}, v{a}"); k(f"v_mul_f32 v{s2}, v{a}, v{a}"); first = False
                    else:
                        k(f"v_add_f32 v{s1}, v{s1}, v{a}"); k(f"v_fmac_f32 v{s2}, v{a}, v{a}")
            reduce_g(k, s1, tmp[0]); reduce_g(k, s2, tmp[0])
        k(f"v_cmp_gt_u32 vcc, 16, v{v_l}")
        k(f"v_cndmask_b32 v{st}, v{st+2}, v{st}, vcc")
        k(f"v_cndmask_b32 v{st+1}, v{st+3}, v{st+1}, vcc")
        k(f"s_lshl_b32 s{s_b}, s{s_j}, 1")
        k(f"s_lshr_b32 s{s_b2}, s{s_w}, 1")
        k(f"s_add_u32 s{s_b}, s{s_b}, s{s_b2}")
        k(f"s_lshl_b32 s{s_b}, s{s_b}, 3")
        k(f"v_cmp_gt_u32 vcc, 32, v{v_l}")
        k(f"s_and_saveexec_b64 s[{sx}:{sx+1}], vcc")
        k(f"buffer_store_dwordx2 {vr(st,2)}, v{v_ra}, s[{ss}:{ss+3}], s{s_b} offen")
    k.label(f"{name}_end"); k("s_endpgm")
    finish(k, g.lds_end, 256)

GC = 2.0 * math.sqrt(2.0 / math.pi) * LOG2E
def gelu4(k, regs, tmp, s_k0, s_k1):
    n = len(regs)
    T = tmp
    assert len(T) >= n
    for j, a in enumerate(regs): k(f"v_mul_f32 v{T[j]}, v{a}, v{a}")
    for j, a in enumerate(regs): k(f"v_fma_f32 v{T[j]}, v{T[j]}, v{s_k1}, v{s_k0}")
    for j, a in enumerate(regs): k(f"v_mul_f32 v{T[j]}, v{T[j]}, v{a}")
    for j, a in enumerate(regs): k(f"v_exp_f32 v{T[j]}, v{T[j]}")
    for j, a in enumerate(regs): k(f"v_add_f32 v{T[j]}, 1.0, v{T[j]}")
    for j, a in enumerate(regs): k(f"v_rcp_f32 v{T[j]}, v{T[j]}")
    for j, a in enumerate(regs): k(f"v_mul_f32 v{a}, v{a}, v{T[j]}")

def gen_k4():
    name = "k4_kernel"
    k = Kern(name)
    load_args(k)
    k("s_cmp_ge_u32 s2, 256")
    k(f"s_cbranch_scc1 {name}_end")
    va = Alloc(1, 256, 'v'); sa = Alloc(44, 100, 's')
    v_l, s_w = lane_wave(k, va, sa)
    tmp = [va.get() for _ in range(4)]
    s_t = sa.get(); s_j = sa.get(); s_tok0 = sa.get(); s_col = sa.get(); s_tb0 = sa.get(); s_fb0 = sa.get()
    sx = sa.get(4); sw = sa.get(4); ss = sa.get(4); sc = sa.get(4); so = sa.get(4)
    s_eps = sa.get()
    k(f"s_and_b32 s{s_j}, s2, 15")
    k(f"s_lshr_b32 s{s_t}, s2, 4")
    k(f"s_lshl_b32 s{s_tok0}, s{s_t}, 7")
    k(f"s_mul_i32 s{s_col}, s{s_j}, 224")
    g = Gemm(k, va, sa, BT=128, RS=256, nf=7, nchunks=8, S=4, G=1)
    k(f"s_lshl_b32 s{s_tb0}, s{s_w}, 1")
    k(f"s_mov_b32 s{s_fb0}, 0")
    k(f"s_mov_b32 s{s_eps}, {f2u(1e-5):#x}")
    k("s_waitcnt lgkmcnt(0)")
    srd(k, sx, P_WS, S_TOK*D*2, WS_H); g.x_srd = sx
    srd(k, sw, P_WIN, D*F*2)
    srd(k, ss, P_WS, S_TOK*128, WS_HS)
    srd(k, sc, P_WS, F*4, WS_CS)
    stl = [va.get(8) for t in range(2)]
    s_a = sa.get(); s_b = sa.get()
    k(f"s_lshl_b32 s{s_a}, s{s_w}, 5")
    k(f"s_add_u32 s{s_a}, s{s_a}, s{s_tok0}")
    k(f"v_and_b32 v{tmp[0]}, 15, v{v_l}")
    k(f"v_add_u32 v{tmp[0]}, s{s_a}, v{tmp[0]}")
    k(f"v_lshlrev_b32 v{tmp[0]}, 7, v{tmp[0]}")
    k(f"v_lshrrev_b32 v{tmp[1]}, 4, v{v_l}")
    k(f"v_lshl_add_u32 v{tmp[0]}, v{tmp[1]}, 5, v{tmp[0]}")
    for t in range(2):
        k(f"buffer_load_dwordx4 {vr(stl[t],4)}, v{tmp[0]}, s[{ss}:{ss+3}], 0 offen offset:{t*2048}")
        k(f"buffer_load_dwordx4 {vr(stl[t]+4,4)}, v{tmp[0]}, s[{ss}:{ss+3}], 0 offen offset:{t*2048+16}")
    cs = [va.get(4) for f in range(7)]
    k(f"v_lshlrev_b32 v{tmp[1]}, 4, v{tmp[1]}")
    k(f"s_lshl_b32 s{s_b}, s{s_col}, 1")
    for f in range(7):
        k(f"buffer_load_dwordx4 {vr(cs[f],4)}, v{tmp[1]}, s[{sc}:{sc+3}], s{s_b} offen offset:{f*64}")
    g.setup_x_dma(v_l, s_w, s_tok0, D*2, tmp)
    mask = g.setup_w_dma(v_l, s_w, s_col, F*2, tmp, nvalid_chunks=14)
    g.w_dma = [[(sw, mask, g.wvoff[m])] for m in range(g.nwp)]
    g.init_scalars(s_w)
    g.prologue_dma()
    g.setup_frag_addrs(v_l, s_tb0, s_fb0, tmp)
    g.zero_acc()
    g.mainloop()
    mean = [va.get() for t in range(2)]; rstd = [va.get() for t in range(2)]
    for t in range(2):
        b = stl[t]
        k(f"v_add_f32 v{mean[t]}, v{b}, v{b+2}"); k(f"v_add_f32 v{rstd[t]}, v{b+1}, v{b+3}")
        k(f"v_add_f32 v{mean[t]}, v{mean[t]}, v{b+4}"); k(f"v_add_f32 v{rstd[t]}, v{rstd[t]}, v{b+5}")
        k(f"v_add_f32 v{mean[t]}, v{mean[t]}, v{b+6}"); k(f"v_add_f32 v{rstd[t]}, v{rstd[t]}, v{b+7}")
        reduce_g(k, mean[t], tmp[0]); reduce_g(k, rstd[t], tmp[0])
        ln_finish(k, mean[t], rstd[t], D, tmp, s_eps)
    vk0 = va.get(); vk1 = va.get()
    k(f"v_mov_b32 v{vk0}, {f2u(-GC):#x}")
    k(f"v_mov_b32 v{vk1}, {f2u(-GC*0.044715):#x}")
    T = [va.get() for _ in range(8)]
    k(f"s_cmp_lt_u32 s{s_j}, 8")
    k(f"s_mov_b32 s{s_b}, {WS_Z1}")
    k(f"s_cselect_b32 s{s_b}, s{s_b}, {WS_Z2}")
    k(f"s_add_u32 s{so}, s{P_WS}, s{s_b}")
    k(f"s_addc_u32 s{so+1}, s{P_WS+1}, 0")
    k(f"s_mov_b32 s{so+2}, {S_TOK*FH*2}")
    k(f"s_mov_b32 s{so+3}, 0x00020000")
    k(f"s_and_b32 s{s_j}, s{s_j}, 7")
    k(f"s_mul_i32 s{s_b}, s{s_j}, 224")
    k(f"v_and_b32 v{tmp[2]}, 31, v{v_l}")
    k(f"v_add_u32 v{tmp[2]}, s{s_a}, v{tmp[2]}")
    k(f"v_mul_u32_u24 v{tmp[2]}, {FH*2}, v{tmp[2]}")
    k(f"v_lshrrev_b32 v{tmp[3]}, 5, v{v_l}")
    k(f"v_lshl_add_u32 v{tmp[2]}, v{tmp[3]}, 4, v{tmp[2]}")
    outs = [va.get(4) for _ in range(2)]
    for f in range(7):
        regs = []
        for t in range(2):
            for r in range(4):
                a = g.acc[t][f] + r
                k(f"v_fma_f32 v{a}, -v{mean[t]}, v{cs[f]+r}, v{a}")
                k(f"v_mul_f32 v{a}, v{rstd[t]}, v{a}")
                regs.append(a)
        gelu4(k, regs, T, vk0, vk1)
        o = outs[f & 1]
        pack_swap(k, o, g.acc[0][f], g.acc[1][f])
        k(f"buffer_store_dwordx4 {vr(o,4)}, v{tmp[2]}, s[{so}:{so+3}], s{s_b} offen offset:{f*32}")
    k.label(f"{name}_end"); k("s_endpgm")
    finish(k, g.lds_end, 256)

def gen_k4b():
    name = "k4b_kernel"
    k = Kern(name)
    load_args(k)
    k("s_cmp_ge_u32 s2, 256")
    k(f"s_cbranch_scc1 {name}_end")
    va = Alloc(1, 256, 'v'); sa = Alloc(44, 100, 's')
    v_l, s_w = lane_wave(k, va, sa)
    tmp = [va.get() for _ in range(4)]
    si = sa.get(4); so = sa.get(4); s_row = sa.get(); s_eps = sa.get()
    k(f"s_lshl_b32 s{s_row}, s2, 3")
    k(f"s_lshl_b32 s{s_eps}, s{s_w}, 1")
    k(f"s_add_u32 s{s_row}, s{s_row}, s{s_eps}")
    k(f"s_mul_i32 s{s_row}, s{s_row}, {FH*2}")
    k(f"s_mov_b32 s{s_eps}, {f2u(1e-5):#x}")
    k(f"v_lshlrev_b32 v{tmp[0]}, 2, v{v_l}")
    k("s_waitcnt lgkmcnt(0)")
    srd(k, si, P_WS, S_TOK*FH*2, WS_Z2)
    srd(k, so, P_WS, S_TOK*FH*2, WS_Z2N)
    d = [[va.get() for _ in range(7)] for r in range(2)]
    s_row2 = sa.get()
    k(f"s_add_u32 s{s_row2}, s{s_row}, {FH*2}")
    for r in range(2):
        for j in range(7):
            k(f"buffer_load_dword v{d[r][j]}, v{tmp[0]}, s[{si}:{si+3}], s{s_row if r == 0 else s_row2} offen offset:{j*256}")
    ones = va.get()
    k(f"v_mov_b32 v{ones}, 0x3f803f80")
    k("s_waitcnt vmcnt(0)")
    for r in range(2):
        s1 = va.get(); s2 = va.get()
        k(f"v_mov_b32 v{s1}, 0"); k(f"v_mov_b32 v{s2}, 0")
        for j in range(7):
            k(f"v_dot2_f32_bf16 v{s1}, v{d[r][j]}, v{ones}, v{s1}")
            k(f"v_dot2_f32_bf16 v{s2}, v{d[r][j]}, v{d[r][j]}, v{s2}")
        for s in (s1, s2):
            for sh in (1, 2, 4, 8):
                k(f"v_add_f32_dpp v{s}, v{s}, v{s} row_ror:{sh} row_mask:0xf bank_mask:0xf")
            reduce_g(k, s, tmp[1])
        ln_finish(k, s1, s2, FH, tmp, s_eps)
        for j in range(7):
            x = d[r][j]
            k(f"v_lshlrev_b32 v{tmp[1]}, 16, v{x}")
            k(f"v_and_b32 v{tmp[2]}, 0xffff0000, v{x}")
            k(f"v_sub_f32 v{tmp[1]}, v{tmp[1]}, v{s1}")
            k(f"v_sub_f32 v{tmp[2]}, v{tmp[2]}, v{s1}")
            k(f"v_mul_f32 v{tmp[1]}, v{tmp[1]}, v{s2}")
            k(f"v_mul_f32 v{tmp[2]}, v{tmp[2]}, v{s2}")
            k(f"v_cvt_pk_bf16_f32 v{x}, v{tmp[1]}, v{tmp[2]}")
            k(f"buffer_store_dword v{x}, v{tmp[0]}, s[{so}:{so+3}], s{s_row if r == 0 else s_row2} offen offset:{j*256}")
    k.label(f"{name}_end"); k("s_endpgm")
    finish(k, 0, 256)

def gen_k5():
    name = "k5_kernel"
    k = Kern(name)
    load_args(k)
    k("s_cmp_ge_u32 s2, 256")
    k(f"s_cbranch_scc1 {name}_end")
    va = Alloc(1, 256, 'v'); sa = Alloc(44, 100, 's')
    v_l, s_w = lane_wave(k, va, sa)
    tmp = [va.get() for _ in range(4)]
    s_t = sa.get(); s_j = sa.get(); s_tok0 = sa.get(); s_col = sa.get(); s_tb0 = sa.get(); s_fb0 = sa.get()
    sx = sa.get(4); sw = sa.get(4); sz = sa.get(4); sb = sa.get(4); so = sa.get(4)
    s_a = sa.get(); s_b = sa.get()
    k(f"s_and_b32 s{s_a}, s2, 7")
    k(f"s_lshr_b32 s{s_b}, s2, 3")
    k(f"s_lshr_b32 s{s_t}, s{s_a}, 1")
    k(f"s_lshl_b32 s{s_t}, s{s_t}, 3")
    k(f"s_and_b32 s{s_j}, s{s_b}, 7")
    k(f"s_add_u32 s{s_t}, s{s_t}, s{s_j}")
    k(f"s_and_b32 s{s_j}, s{s_a}, 1")
    k(f"s_lshl_b32 s{s_j}, s{s_j}, 2")
    k(f"s_lshr_b32 s{s_b}, s{s_b}, 3")
    k(f"s_add_u32 s{s_j}, s{s_j}, s{s_b}")
    k(f"s_lshl_b32 s{s_tok0}, s{s_t}, 6")
    k(f"s_mul_i32 s{s_col}, s{s_j}, 224")
    g = Gemm(k, va, sa, BT=64, RS=256, nf=4, nchunks=32, S=4, G=1)
    k(f"s_and_b32 s{s_tb0}, s{s_w}, 1")
    k(f"s_lshl_b32 s{s_tb0}, s{s_tb0}, 1")
    k(f"s_lshr_b32 s{s_fb0}, s{s_w}, 1")
    k(f"s_mul_i32 s{s_fb0}, s{s_fb0}, 3")
    k("s_waitcnt lgkmcnt(0)")
    srd(k, sx, P_WSP, S_TOK*S_TOK*2); g.x_srd = sx
    srd(k, sw, P_WS, S_TOK*FH*2, WS_Z2N)
    srd(k, sz, P_WS, S_TOK*FH*2, WS_Z1)
    srd(k, sb, P_BSP, S_TOK*2)
    srd(k, so, P_WS, S_TOK*FH*2, WS_U)
    z1 = [[va.get(2) for f in range(4)] for t in range(2)]
    bb = [va.get() for t in range(2)]
    k(f"s_lshl_b32 s{s_a}, s{s_tb0}, 4")
    k(f"s_add_u32 s{s_a}, s{s_a}, s{s_tok0}")
    k(f"v_and_b32 v{tmp[0]}, 15, v{v_l}")
    k(f"v_add_u32 v{tmp[0]}, s{s_a}, v{tmp[0]}")
    k(f"v_lshlrev_b32 v{tmp[2]}, 1, v{tmp[0]}")
    for t in range(2):
        k(f"buffer_load_ushort v{bb[t]}, v{tmp[2]}, s[{sb}:{sb+3}], 0 offen offset:{t*32}")
    k(f"v_mul_u32_u24 v{tmp[0]}, {FH*2}, v{tmp[0]}")
    k(f"v_lshrrev_b32 v{tmp[1]}, 4, v{v_l}")
    k(f"v_lshl_add_u32 v{tmp[0]}, v{tmp[1]}, 3, v{tmp[0]}")
    k(f"s_lshl_b32 s{s_b}, s{s_fb0}, 5")
    k(f"s_add_u32 s{s_b}, s{s_b}, s{s_col}")
    s_b2 = sa.get()
    k(f"s_add_u32 s{s_b2}, s{s_b}, {16*FH*2}")
    for t in range(2):
        for f in range(4):
            k(f"buffer_load_dwordx2 {vr(z1[t][f],2)}, v{tmp[0]}, s[{sz}:{sz+3}], s{s_b if t == 0 else s_b2} offen offset:{f*32}")
    g.setup_x_dma(v_l, s_w, s_tok0, S_TOK*2, tmp)
    mask = g.setup_w_dma(v_l, s_w, s_col, FH*2, tmp, nvalid_chunks=14)
    g.w_dma = [[(sw, mask, g.wvoff[m])] for m in range(g.nwp)]
    g.init_scalars(s_w)
    g.prologue_dma()
    g.setup_frag_addrs(v_l, s_tb0, s_fb0, tmp)
    g.zero_acc()
    g.mainloop()
    for t in range(2):
        k(f"v_lshlrev_b32 v{bb[t]}, 16, v{bb[t]}")
        for f in range(4):
            a = g.acc[t][f]; z = z1[t][f]
            for h in range(2):
                k(f"v_lshlrev_b32 v{tmp[0]}, 16, v{z+h}")
                k(f"v_and_b32 v{tmp[1]}, 0xffff0000, v{z+h}")
                k(f"v_add_f32 v{a+2*h}, v{a+2*h}, v{bb[t]}")
                k(f"v_add_f32 v{a+2*h+1}, v{a+2*h+1}, v{bb[t]}")
                k(f"v_mul_f32 v{a+2*h}, v{a+2*h}, v{tmp[0]}")
                k(f"v_mul_f32 v{a+2*h+1}, v{a+2*h+1}, v{tmp[1]}")
    k(f"s_and_b32 s{s_a}, s{s_w}, 1")
    k(f"s_lshl_b32 s{s_a}, s{s_a}, 5")
    k(f"s_add_u32 s{s_a}, s{s_a}, s{s_tok0}")
    k(f"v_and_b32 v{tmp[2]}, 31, v{v_l}")
    k(f"v_add_u32 v{tmp[2]}, s{s_a}, v{tmp[2]}")
    k(f"v_mul_u32_u24 v{tmp[2]}, {FH*2}, v{tmp[2]}")
    k(f"v_lshrrev_b32 v{tmp[3]}, 5, v{v_l}")
    k(f"v_lshl_add_u32 v{tmp[2]}, v{tmp[3]}, 4, v{tmp[2]}")
    outs = [va.get(4) for _ in range(2)]
    for f in range(4):
        o = outs[f & 1]
        pack_swap(k, o, g.acc[0][f], g.acc[1][f])
        k(f"buffer_store_dwordx4 {vr(o,4)}, v{tmp[2]}, s[{so}:{so+3}], s{s_b} offen offset:{f*32}")
    k.label(f"{name}_end"); k("s_endpgm")
    finish(k, g.lds_end, 256)

HEADER = open('cdna_kernels/' + NAME + '.s.ref').read().split('; Override launch')[0]

def emit(path, order):
    byname = {k.name: (k, lds, grid, block) for (k, lds, grid, block) in kernels}
    o = [HEADER.rstrip('\n')]
    for n in order:
        k, lds, grid, block = byname[n]
        o.append(f"; @launch kernel={n} grid=({grid},1,1) block=({block},1,1) lds={lds}")
    o.append('.amdgcn_target "amdgcn-amd-amdhsa--gfx950"')
    o.append('.text')
    seen = []
    for n in order:
        if n in seen: continue
        seen.append(n)
        k = byname[n][0]
        o += [f".globl {n}", ".p2align 8", f".type {n},@function", f"{n}:", k.text()]
    o.append('.section .rodata,"a"')
    for n in seen:
        k = byname[n][0]
        nv = max(k.nv, 8); acc = (nv + 3)//4*4
        tot = acc + k.na if k.na else nv
        o += [".p2align 6", f".amdhsa_kernel {n}", f"  .amdhsa_next_free_vgpr {tot}", f"  .amdhsa_next_free_sgpr {max(k.ns, 48)}",
              f"  .amdhsa_accum_offset {acc}", "  .amdhsa_group_segment_fixed_size 0", "  .amdhsa_kernarg_size 104",
              "  .amdhsa_user_sgpr_count 2", "  .amdhsa_user_sgpr_kernarg_segment_ptr 1", "  .amdhsa_system_sgpr_workgroup_id_x 1",
              "  .amdhsa_float_denorm_mode_32 3",
              ".end_amdhsa_kernel"]
    open(path, 'w').write('\n'.join(o) + '\n')

if __name__ == "__main__":
    gen_k1(); gen_k2()
    gen_res_gemm("k3_kernel", WS_O, D*2, 8, P_WO, D*D*2, P_X, 0, P_WS, WS_H, True)
    gen_k4(); gen_k4b(); gen_k5()
    gen_res_gemm("k6_kernel", WS_U, FH*2, 14, P_WOUT, FH*D*2, P_WS, WS_H, P_OUT, 0, False)
    out = sys.argv[1] if len(sys.argv) > 1 else 'cdna_kernels/' + NAME + '.s'
    emit(out, ["k1_kernel", "k2_kernel", "k3_kernel", "k4_kernel", "k4b_kernel", "k5_kernel", "k6_kernel"])
```
